```python
import torch

def _softmax(x, axis=-1):
    return torch.softmax(x, dim=axis)
def _gelu(x):
    return torch.nn.functional.gelu(x, approximate="tanh")
def _silu(x):
    return torch.nn.functional.silu(x)
def _sigmoid(x):
    return torch.sigmoid(x)
def _layernorm(x, axis=-1, eps=1e-5):
    m = x.mean(dim=axis, keepdim=True)
    v = x.var(dim=axis, keepdim=True, unbiased=False)
    return (x - m) / torch.sqrt(v + eps)
def _scatter_add(tgt, idx, src, axis=0):
    return tgt.clone().index_add_(axis, idx, src)
def _segment_sum(src, seg, n):
    out = torch.zeros((n,) + src.shape[1:], dtype=src.dtype)
    return out.index_add_(0, seg, src)
def _pad(x, pw):
    flat = tuple(v for pair in reversed(pw) for v in pair)
    return torch.nn.functional.pad(x, flat)

kernel_name = 'recurrent_scan__spectral_fnet__glu_gated_geglu__prompt'

def setup_inputs():

    _w = (lambda a: (lambda t: t.to(torch.bfloat16) if t.is_floating_point() else t)(torch.as_tensor(a)))
    def _A_setup():
        B, S, D = 1, 2048, 512
        ns = torch.arange(S)[:, None] * torch.arange(S)[None, :]
        nd = torch.arange(D)[:, None] * torch.arange(D)[None, :]
        Ws_re = torch.cos(-2.0 * torch.pi * ns / S).to(float)
        Ws_im = torch.sin(-2.0 * torch.pi * ns / S).to(float)
        Wd_re = torch.cos(-2.0 * torch.pi * nd / D).to(float)
        Wd_im = torch.sin(-2.0 * torch.pi * nd / D).to(float)
        return {
            "x": _w((lambda *s: torch.randn(*s, dtype=torch.bfloat16) * 0.05)(B, S, D)),
            "dft_seq_re": _w(Ws_re),
            "dft_seq_im": _w(Ws_im),
            "dft_hid_re": _w(Wd_re),
            "dft_hid_im": _w(Wd_im),
        }
    _A_in = _A_setup()

    def _B_setup():
        B, S, Dm, Df = 1, 2048, 512, 1376
        return {
            "x": _w((lambda *s: torch.randn(*s, dtype=torch.bfloat16) * 0.05)(B, S, Dm)),
            "w_gate": _w((lambda *s: torch.randn(*s, dtype=torch.bfloat16) * 0.05)(Dm, Df) * (Dm ** -0.5)),
            "w_up": _w((lambda *s: torch.randn(*s, dtype=torch.bfloat16) * 0.05)(Dm, Df) * (Dm ** -0.5)),
            "w_down": _w((lambda *s: torch.randn(*s, dtype=torch.bfloat16) * 0.05)(Df, Dm) * (Df ** -0.5)),
        }
    _B_in = _B_setup()

    return {
        "A_x": _A_in["x"],
        "A_dft_seq_re": _A_in["dft_seq_re"],
        "A_dft_seq_im": _A_in["dft_seq_im"],
        "A_dft_hid_re": _A_in["dft_hid_re"],
        "A_dft_hid_im": _A_in["dft_hid_im"],
        "B_x": _B_in["x"],
        "B_w_gate": _B_in["w_gate"],
        "B_w_up": _B_in["w_up"],
        "B_w_down": _B_in["w_down"],
    }

def reference(A_x, A_dft_seq_re, A_dft_seq_im, A_dft_hid_re, A_dft_hid_im, B_x, B_w_gate, B_w_up, B_w_down):
    def _A_ref(x, dft_seq_re, dft_seq_im, dft_hid_re, dft_hid_im):
        a = torch.einsum("bsd,ed->bse", x, dft_hid_re)
        b = torch.einsum("bsd,ed->bse", x, dft_hid_im)
        y = torch.einsum("ts,bse->bte", dft_seq_re, a) - torch.einsum("ts,bse->bte", dft_seq_im, b)
        return y

    def _B_ref(x, w_gate, w_up, w_down):
        g = torch.einsum("bsd,df->bsf", x, w_gate)
        u = torch.einsum("bsd,df->bsf", x, w_up)
        h = _gelu(g) * u
        return torch.einsum("bsf,fd->bsd", h, w_down)

    x = A_x
    xn = _layernorm(x, axis=-1)
    s = _A_ref(xn, A_dft_seq_re, A_dft_seq_im, A_dft_hid_re, A_dft_hid_im)
    g = _silu(_B_ref(xn, B_w_gate, B_w_up, B_w_down))
    return x + s * g
```

```python
import sys
HEAD = '''; @launch grid=({nwg},1,1) block=({thr},1,1) lds={lds}
.amdgcn_target "amdgcn-amd-amdhsa--gfx950"
.text
.globl mb_kernel
.p2align 8
.type mb_kernel,@function
mb_kernel:
'''
TAIL = '''
s_endpgm
.section .rodata,"a"
.p2align 6
.amdhsa_kernel mb_kernel
  .amdhsa_next_free_vgpr {vg}
  .amdhsa_next_free_sgpr 102
  .amdhsa_accum_offset {ao}
  .amdhsa_group_segment_fixed_size 0
  .amdhsa_kernarg_size 16
  .amdhsa_user_sgpr_count 2
  .amdhsa_user_sgpr_kernarg_segment_ptr 1
  .amdhsa_system_sgpr_workgroup_id_x 1
.end_amdhsa_kernel
'''
def gen(name, lpr, stride, colmul, colmod, mis, ninstr=40, reps=8, waves=8, to_lds=True, xor=0):
    rpi = 64 // lpr
    L = []
    A = L.append
    A(HEAD.format(nwg=256, thr=waves * 64, lds=160 * 1024))
    A('s_load_dwordx4 s[4:7], s[0:1], 0')
    A('v_and_b32 v1, 63, v0')
    A('v_lshrrev_b32 v2, 6, v0')
    A('s_nop 0')
    A('v_readfirstlane_b32 s20, v2')
    A('s_waitcnt lgkmcnt(0)')
    A('s_mov_b32 s8, s4'); A('s_mov_b32 s9, s5'); A('s_mov_b32 s10, %d' % (16 << 20)); A('s_mov_b32 s11, 0x20000')
    A('s_mov_b32 s12, s6'); A('s_mov_b32 s13, s7'); A('s_mov_b32 s14, %d' % (1 << 18)); A('s_mov_b32 s15, 0x20000')
    sh = lpr.bit_length() - 1
    A('v_lshrrev_b32 v3, %d, v1' % sh)
    A('v_and_b32 v4, %d, v1' % (lpr - 1))
    if xor:
        A('v_and_b32 v6, %d, v3' % (xor))
        A('v_xor_b32 v4, v4, v6')
    A('s_mov_b32 s21, %d' % stride)
    A('v_mul_lo_u32 v3, v3, s21')
    A('v_lshl_add_u32 v3, v4, 4, v3')
    A('s_lshr_b32 s22, s2, 3')
    A('s_and_b32 s22, s22, %d' % (colmod - 1))
    A('s_mul_i32 s22, s22, %d' % colmul)
    A('s_add_u32 s22, s22, %d' % mis)
    A('s_mul_i32 s23, s20, %d' % (rpi * stride))
    A('s_add_u32 s22, s22, s23')
    A('s_lshl_b32 s24, s20, 10')
    A('s_mov_b32 s30, 0')
    A('L_rep:')
    A('s_cmp_eq_u32 s30, 1')
    A('s_cbranch_scc0 L_nots')
    A('s_barrier')
    A('s_memtime s[32:33]')
    A('s_waitcnt lgkmcnt(0)')
    A('L_nots:')
    A('s_mov_b32 s25, s22')
    A('s_mov_b32 s26, s24')
    for i in range(ninstr):
        if to_lds:
            A('s_mov_b32 m0, s26')
            A('s_add_u32 s26, s26, %d' % (waves * 1024))
            A('buffer_load_dwordx4 v3, s[8:11], s25 offen lds')
            if (i + 1) % (160 // waves) == 0:
                A('s_mov_b32 s26, s24')
        else:
            r = 8 + 4 * (i % 40)
            A('buffer_load_dwordx4 v[%d:%d], v3, s[8:11], s25 offen' % (r, r + 3))
        A('s_add_u32 s25, s25, %d' % (waves * rpi * stride))
    A('s_waitcnt vmcnt(%d)' % 16)
    A('s_add_u32 s30, s30, 1')
    A('s_cmp_lt_u32 s30, %d' % reps)
    A('s_cbranch_scc1 L_rep')
    A('s_waitcnt vmcnt(0)')
    A('s_memtime s[34:35]')
    A('s_waitcnt lgkmcnt(0)')
    A('s_sub_u32 s34, s34, s32')
    A('s_mul_i32 s36, s2, %d' % waves)
    A('s_add_u32 s36, s36, s20')
    A('s_lshl_b32 s36, s36, 2')
    A('v_mov_b32 v5, s34')
    A('v_mov_b32 v6, s36')
    A('buffer_store_dword v5, v6, s[12:15], 0 offen')
    A(TAIL.format(vg=256, ao=256))
    open(name, 'w').write('\n'.join(L))
    return (reps - 1) * ninstr * waves * 1024
cfgs = [
 ('c1k',      64, 1024, 327680, 4, 0),
 ('r256a',    16, 2752*2, 256, 8, 0),
 ('r128a',    8, 2816, 128, 8, 0),
 ('r128m32',  8, 2816, 128, 8, 32),
 ('r128m64',  8, 2816, 128, 8, 64),
 ('r128w',    8, 2752, 224, 8, 0),
 ('r256w',    16, 2752, 224, 8, 0),
 ('r64a',     4, 1024, 64, 8, 0),
 ('r64m32',   4, 1024, 64, 8, 32),
 ('r32a',     2, 512, 32, 8, 0),
 ('r16a',     1, 256, 16, 8, 0),
]
if __name__ == '__main__':
    for c in cfgs:
        for to_lds in (True, False):
            n = gen('mb1_%s_%s.s' % (c[0], 'lds' if to_lds else 'reg'), *c[1:], to_lds=to_lds)
    gen('mb1_r128x_lds.s', 8, 1024, 128, 8, 0, xor=7)
    gen('mb1_c1k4w_lds.s', 64, 1024, 327680, 4, 0, waves=4, ninstr=40)
    gen('mb1_c1k4w_reg.s', 64, 1024, 327680, 4, 0, waves=4, ninstr=40, to_lds=False)
    print(n)
```

```python
import gen_mb1 as g
def patch(name, code):
    s = open(name).read()
    s = s.replace('s_mov_b32 s21,', code + '\ns_mov_b32 s21,', 1)
    open(name, 'w').write(s)
g.gen('mb8_w_plain.s', 16, 2752, 256, 8, 0)
g.gen('mb8_w_rot.s', 16, 2752, 256, 8, 0)
patch('mb8_w_rot.s', '''v_and_b32 v7, 1, v3
v_mul_u32_u24 v7, 12, v7
v_add_u32 v4, v4, v7
v_and_b32 v4, 15, v4''')
g.gen('mb8_w_rotbad.s', 16, 2752, 256, 8, 0)
patch('mb8_w_rotbad.s', '''v_and_b32 v7, 1, v3
v_xor_b32 v7, 1, v7
v_mul_u32_u24 v7, 12, v7
v_add_u32 v4, v4, v7
v_and_b32 v4, 15, v4''')
```
